```python
import torch

def _softmax(x, axis=-1):
    return torch.softmax(x, dim=axis)
def _gelu(x):
    return torch.nn.functional.gelu(x, approximate="tanh")
def _silu(x):
    return torch.nn.functional.silu(x)
def _sigmoid(x):
    return torch.sigmoid(x)
def _layernorm(x, axis=-1, eps=1e-5):
    m = x.mean(dim=axis, keepdim=True)
    v = x.var(dim=axis, keepdim=True, unbiased=False)
    return (x - m) / torch.sqrt(v + eps)
def _scatter_add(tgt, idx, src, axis=0):
    return tgt.clone().index_add_(axis, idx, src)
def _segment_sum(src, seg, n):
    out = torch.zeros((n,) + src.shape[1:], dtype=src.dtype)
    return out.index_add_(0, seg, src)
def _pad(x, pw):
    flat = tuple(v for pair in reversed(pw) for v in pair)
    return torch.nn.functional.pad(x, flat)

kernel_name = 'interleave_layers__spectral_gfnet__spectral_gfnet__prompt'

def setup_inputs():

    _w = (lambda a: (lambda t: t.to(torch.bfloat16) if t.is_floating_point() else t)(torch.as_tensor(a)))
    def _A_setup():
        B, S, D = 1, 2048, 640
        Df = D // 2 + 1
        return {
            "x": _w((lambda *s: torch.randn(*s, dtype=torch.bfloat16) * 0.05)(B, S, D)),
            "w_r": _w((lambda *s: torch.randn(*s, dtype=torch.bfloat16) * 0.2)(S, Df) * 0.02),
            "w_i": _w((lambda *s: torch.randn(*s, dtype=torch.bfloat16) * 0.2)(S, Df) * 0.02),
        }
    _A_in = _A_setup()

    def _B_setup():
        B, S, D = 1, 2048, 640
        Df = D // 2 + 1
        return {
            "x": _w((lambda *s: torch.randn(*s, dtype=torch.bfloat16) * 0.05)(B, S, D)),
            "w_r": _w((lambda *s: torch.randn(*s, dtype=torch.bfloat16) * 0.2)(S, Df) * 0.02),
            "w_i": _w((lambda *s: torch.randn(*s, dtype=torch.bfloat16) * 0.2)(S, Df) * 0.02),
        }
    _B_in = _B_setup()

    return {
        "A_x": _A_in["x"],
        "A_w_r": _A_in["w_r"],
        "A_w_i": _A_in["w_i"],
        "B_x": _B_in["x"],
        "B_w_r": _B_in["w_r"],
        "B_w_i": _B_in["w_i"],
    }

def reference(A_x, A_w_r, A_w_i, B_x, B_w_r, B_w_i):
    def _A_ref(x, w_r, w_i):
        B, S, D = x.shape
        X = (lambda x, axes=(-2,-1): torch.fft.rfft2(x.float(), dim=axes))(x, axes=(-2, -1))
        W = w_r + 1j * w_i
        X = X * W
        y = (lambda x, s, axes=(-2,-1): torch.fft.irfft2(x, s=s, dim=axes).to(torch.bfloat16))(X, (S, D), axes=(-2, -1))
        return y

    def _B_ref(x, w_r, w_i):
        B, S, D = x.shape
        X = (lambda x, axes=(-2,-1): torch.fft.rfft2(x.float(), dim=axes))(x, axes=(-2, -1))
        W = w_r + 1j * w_i
        X = X * W
        y = (lambda x, s, axes=(-2,-1): torch.fft.irfft2(x, s=s, dim=axes).to(torch.bfloat16))(X, (S, D), axes=(-2, -1))
        return y

    x = A_x
    x = x + _A_ref(_layernorm(x, axis=-1), A_w_r, A_w_i)
    x = x + _B_ref(_layernorm(x, axis=-1), B_w_r, B_w_i)
    x = x + _A_ref(_layernorm(x, axis=-1), A_w_r, A_w_i)
    x = x + _B_ref(_layernorm(x, axis=-1), B_w_r, B_w_i)
    return x
```

```python
import re
import subprocess
import tempfile
import os

CLANG = "clang"
OBJDUMP = "llvm-objdump"

TRANS = ("v_sin_", "v_cos_", "v_rsq_", "v_rcp_", "v_sqrt_", "v_exp_", "v_log_")
RMW = ("v_fmac_", "v_dot2c_", "v_fma_mixlo", "v_fma_mixhi", "v_pk_fmac")
REG_RE = re.compile(r"(?<![\w.])([vsa])(\d+)\b|(?<![\w.])([vsa])\[(\d+):(\d+)\]|\b(vcc|exec|m0)\b")


def regs_of(text):
    out = set()
    for m in REG_RE.finditer(text):
        if m.group(1):
            out.add((m.group(1), int(m.group(2))))
        elif m.group(3):
            for i in range(int(m.group(4)), int(m.group(5)) + 1):
                out.add((m.group(3), i))
        else:
            out.add((m.group(6), 0))
    return out


class Ins:
    def __init__(self, text):
        self.text = text
        t = text.split(";")[0].strip()
        self.label = t[:-1] if t.endswith(":") else None
        self.directive = t.startswith(".") and not self.label
        self.op = "" if (self.label or self.directive or not t) else t.split()[0]
        rest = t[len(self.op):].strip() if self.op else ""
        ops = []
        depth = 0
        cur = ""
        for ch in rest:
            if ch == "[":
                depth += 1
            if ch == "]":
                depth -= 1
            if ch == "," and depth == 0:
                ops.append(cur.strip())
                cur = ""
            else:
                cur += ch
        if cur.strip():
            ops.append(cur.strip())
        self.mods = ""
        if ops:
            parts = ops[-1].split(None, 1)
            ops[-1] = parts[0]
            self.mods = parts[1] if len(parts) > 1 else ""
        self.ops = ops
        op = self.op
        self.mfma = op.startswith("v_mfma")
        self.valu = op.startswith("v_") and not self.mfma
        self.trans = op.startswith(TRANS)
        self.ds = op.startswith("ds_")
        self.vmem = op.startswith(("buffer_", "global_"))
        self.salu = op.startswith("s_")
        self.dpp = "_dpp" in op
        self.branch = op.startswith(("s_branch", "s_cbranch"))
        self.target = ops[0] if self.branch else None
        self.end = op in ("s_endpgm", "s_branch")
        self.defs, self.uses = set(), set()
        R = [regs_of(o) for o in ops]
        if self.mfma:
            self.defs = R[0]
            self.srcA, self.srcB, self.srcC = R[1], R[2], R[3]
            self.uses = R[1] | R[2] | R[3]
        elif self.valu:
            if op.startswith(("v_swap", "v_permlane")):
                self.defs = R[0] | R[1]
                self.uses = R[0] | R[1]
            elif op == "v_nop":
                pass
            else:
                self.defs = set(R[0])
                for r in R[1:]:
                    self.uses |= r
                if op.startswith(RMW) or self.dpp or "sdwa" in op or op.startswith("v_writelane"):
                    self.uses |= R[0]
        elif self.ds:
            if op.startswith("ds_read"):
                self.defs = R[0]
                for r in R[1:]:
                    self.uses |= r
            else:
                for r in R:
                    self.uses |= r
            if "addtid" in op:
                self.uses.add(("m0", 0))
        elif self.vmem:
            if "_load_" in op:
                self.defs = R[0]
                for r in R[1:]:
                    self.uses |= r
            else:
                for r in R:
                    self.uses |= r
                self.data = R[0] if op.startswith("buffer_") else R[1]
        elif self.salu and not self.branch and ops and not op.startswith(
                ("s_waitcnt", "s_nop", "s_barrier", "s_setprio", "s_sleep")):
            if op.startswith(("s_cmp", "s_bitcmp")):
                for r in R:
                    self.uses |= r
            else:
                self.defs = set(R[0])
                for r in R[1:]:
                    self.uses |= r

    def states(self):
        if self.label or self.directive or not self.op:
            return 0
        if self.op == "s_nop":
            return int(self.ops[0], 0) + 1
        return 1


def vg(s):
    return {r for r in s if r[0] in ("v", "a")}


def sg(s):
    return {r for r in s if r[0] in ("s", "vcc")}


def need(p, c):
    n = 0
    if p.valu:
        pv = vg(p.defs)
        ps = sg(p.defs)
        if c.mfma and pv & c.uses:
            n = max(n, 2)
        if c.valu and pv & c.uses:
            if c.dpp or c.op.startswith("v_permlane"):
                n = max(n, 2)
            if c.op.startswith(("v_readlane", "v_readfirstlane")):
                n = max(n, 1)
            if p.trans:
                n = max(n, 1)
        if p.op.startswith("v_dot") and pv & (c.uses | c.defs):
            if not (c.op == p.op and not pv & (regs_of(c.ops[1]) | regs_of(c.ops[2]))):
                n = max(n, 3)
        if p.trans and (c.vmem or c.ds) and pv & c.uses:
            n = max(n, 1)
        if c.valu and (p.op.startswith(("v_fma_mixlo", "v_fma_mixhi")) or "sdwa" in p.op) and pv & (c.uses | c.defs):
            n = max(n, 1)
        if ps & c.uses:
            if c.valu or c.mfma:
                n = max(n, 4 if c.op.startswith(("v_readlane", "v_writelane")) else 2)
            if c.vmem:
                n = max(n, 5)
            if c.salu:
                n = max(n, 1)
        if ps and c.op.startswith(("s_cbranch_vcc",)) and ("vcc", 0) in ps:
            n = max(n, 1)
    if p.mfma:
        big = "32x32" in p.op
        if c.mfma:
            if p.defs & (c.srcA | c.srcB):
                n = max(n, 12 if big else 8)
            if p.defs & c.srcC and p.defs != c.srcC:
                n = max(n, 10 if big else 6)
            if p.defs & c.defs and p.defs != c.srcC:
                n = max(n, 10 if big else 6)
        elif (c.valu or c.ds or c.vmem) and p.defs & (c.uses | c.defs):
            n = max(n, 12 if big else 8)
        if (c.valu or c.ds or c.vmem) and vg(p.srcC) & c.defs:
            n = max(n, 7 if big else 3)
    if p.vmem and ("x3" in p.op or "x4" in p.op) and "_store_" in p.op:
        if (c.valu or c.mfma or c.ds or c.vmem) and p.data & c.defs:
            n = max(n, 2)
    if p.salu and ("m0", 0) in p.defs and ("m0", 0) in c.uses:
        n = max(n, 1)
    return n


WINDOW = 14


class Asm:
    def __init__(self):
        self.lines = []

    def __call__(self, text):
        for ln in text.split("\n"):
            if ln.strip():
                self.lines.append(ln.strip())

    def extend(self, other):
        self.lines.extend(other.lines if isinstance(other, Asm) else other)


def preds_windows(ins, idx, labels_in):
    out = []

    def walk(i, acc, dist, seen):
        while i >= 0:
            x = ins[i]
            if x.label:
                for b in labels_in.get(x.label, []):
                    if b not in seen:
                        walk(b - 1, acc + [ins[b]], dist + 1, seen | {b})
                j = i - 1
                while j >= 0 and not ins[j].op and not ins[j].label:
                    j -= 1
                if j >= 0 and ins[j].end:
                    return
                i -= 1
                continue
            if x.op:
                acc = acc + [x]
                dist += x.states()
                if dist >= WINDOW:
                    break
            i -= 1
        out.append(acc)

    walk(idx - 1, [], 0, frozenset())
    return out


def fix_hazards(lines):
    ins = [Ins(l) for l in lines]
    changed = True
    added = 0
    while changed:
        changed = False
        labels_in = {}
        for i, x in enumerate(ins):
            if x.branch:
                labels_in.setdefault(x.target, []).append(i)
        for i, c in enumerate(ins):
            if not c.op or c.op in ("s_nop",):
                continue
            short = 0
            for win in preds_windows(ins, i, labels_in):
                d = 0
                for p in win:
                    n = need(p, c)
                    if n > d:
                        short = max(short, n - d)
                    d += p.states()
            if short:
                ins.insert(i, Ins("s_nop %d" % (short - 1)))
                added += short
                changed = True
                break
    return [x.text for x in ins], added


def sizes_of(lines):
    src = '.amdgcn_target "amdgcn-amd-amdhsa--gfx950"\n.text\n' + "\n".join(lines) + "\n"
    with tempfile.TemporaryDirectory() as td:
        s = os.path.join(td, "a.s")
        o = os.path.join(td, "a.o")
        open(s, "w").write(src)
        r = subprocess.run([CLANG, "-x", "assembler", "-target", "amdgcn-amd-amdhsa", "-mcpu=gfx950", "-c", s, "-o", o],
                           capture_output=True, text=True)
        if r.returncode:
            msg = r.stderr.split("\n")
            raise RuntimeError("\n".join(msg[:30]))
        d = subprocess.run([OBJDUMP, "-d", "-z", "--mcpu=gfx950", o], capture_output=True, text=True).stdout
    enc = [len(m.group(1).split()) * 4 for m in re.finditer(r"// [0-9A-F]{12}: ([0-9A-F ]+)", d)]
    out = []
    k = 0
    for l in lines:
        x = Ins(l)
        if x.op:
            out.append(enc[k])
            k += 1
        else:
            out.append(0)
    assert k == len(enc), (k, len(enc))
    return out


NO_E64 = ("v_readfirstlane", "v_swap", "v_permlane", "v_dot2c", "v_nop", "v_accvgpr")


def align8(lines):
    sz = sizes_of(lines)
    out = []
    pos = 0
    n = len(lines)
    for i, l in enumerate(lines):
        s = sz[i]
        if s == 4 and pos % 8 == 0:
            j = i + 1
            while j < n and sz[j] == 0:
                j += 1
            if j < n and sz[j] == 8:
                x = Ins(l)
                run = 0
                k = j
                while k < n and sz[k] != 4:
                    run += sz[k] == 8
                    k += 1
                if x.valu and not x.op.startswith(NO_E64) and not x.op.endswith("_e32"):
                    l = l.replace(x.op, x.op + "_e64", 1)
                    s = 8
                elif run >= 3 and not x.end:
                    if x.op == "s_nop" and int(x.ops[0], 0) >= 1:
                        out.append("s_nop %d" % (int(x.ops[0], 0) - 1))
                        l = "s_nop 0"
                    else:
                        out.append("s_nop 0")
                    pos += 4
        out.append(l)
        pos += s
    return out, pos


class Regs:
    def __init__(self, n=256, first=1):
        self.free = set(range(first, n))
        self.named = {}
        self.high = first

    def alloc(self, name, cnt=1, align=None):
        align = align or (4 if cnt >= 3 else cnt)
        assert name not in self.named, name
        b = 0
        while True:
            if b + cnt > 256:
                raise RuntimeError("out of VGPRs for " + name)
            if all((b + i) in self.free for i in range(cnt)):
                break
            b += align
        for i in range(cnt):
            self.free.discard(b + i)
        self.named[name] = (b, cnt)
        self.high = max(self.high, b + cnt)
        return V(b, cnt)

    def release(self, *names):
        for name in names:
            b, cnt = self.named.pop(name)
            self.free.update(range(b, b + cnt))


class V:
    def __init__(self, base, cnt=1):
        self.base, self.cnt = base, cnt

    def __getitem__(self, i):
        if isinstance(i, slice):
            a = i.start or 0
            b = self.cnt if i.stop is None else i.stop
            assert 0 <= a < b <= self.cnt
            return V(self.base + a, b - a)
        assert 0 <= i < self.cnt
        return V(self.base + i, 1)

    def __str__(self):
        return "v%d" % self.base if self.cnt == 1 else "v[%d:%d]" % (self.base, self.base + self.cnt - 1)

    __format__ = lambda self, spec: str(self)
```

```python
import struct
import sys
from asmlib import Asm, Regs, V, fix_hazards, align8

NAME = "interleave_layers__spectral_gfnet__spectral_gfnet__prompt"
STAMPS = "--stamps" in sys.argv
OUT = [a for a in sys.argv[1:] if not a.startswith("--")][0]


def fl(x):
    return "0x%08x" % struct.unpack("<I", struct.pack("<f", x))[0]


WS_EPOCH = 0
WS_SIG = 0x1000
WS_TRIG = 0x4000
WS_RS = 0x8000
WS_PART = 0x40000
PART_L = 32 * 160 * 128
WS_H = 0x220000
WS_WA = 0x4A0000
WS_WB = 0x720000
WS_T2 = 0x9A0000
WS_DBG = 0xC20000
WS_END = 0xCA0000 if STAMPS else WS_DBG

L_XC = 0
L_SH = 0x4000
L_SW = 0x7100
L_RED = 0xA200
L_MAX = 0xAA00
LDS_BYTES = 0xAB00
ROW = 384

sX, sOUT, sWS = "s[4:7]", "s[8:11]", "s[12:15]"
sWRA, sWIA, sWRB, sWIB, sDBG = "s[16:19]", "s[20:23]", "s[24:27]", "s[28:31]", "s[32:35]"
sW, sP, sE, sXoff, sWoff, sPar = "s36", "s37", "s38", "s39", "s40", "s41"
sBud, sLayer = "s42", "s43"
sM1, sM14, sSelLo, sSelHi, sSign, sMag = "s44", "s45", "s46", "s47", "s48", "s49"
sEx2 = "s[50:51]"
sSc, sScN, sIsc, sIscN = "s52", "s53", "s54", "s55"
sPartOff, sRsOff, sCoff = "s56", "s57", "s58"
sS1 = "s59"
sA, sB, sC, sD = "s60", "s61", "s62", "s63"
sPair = "s[64:65]"
sSum, sSq = "s66", "s67"
sBias = "s68"
sWreg = "s69"
sWo = ["s70", "s71", "s72", "s73"]
sPa = ["s74", "s75", "s76", "s77"]

a = Asm()
tail = Asm()
R = Regs()
nlab = [0]


def lab(p):
    nlab[0] += 1
    return "L_%s_%d" % (p, nlab[0])


vSt = R.alloc("stamp") if STAMPS else None


def stamp(o=None):
    if STAMPS:
        (o or a)(f"""s_memrealtime s[98:99]
        s_waitcnt lgkmcnt(0)
        v_writelane_b32 {vSt}, s98, m0
        s_add_u32 m0, m0, 1""")


def spin_tail(again, done, code, tmp):
    t = lab("to")
    a(f"""s_sub_u32 {sBud}, {sBud}, 1
    s_cbranch_scc0 {again}
    s_branch {t}""")
    tail(f"""{t}:
    s_mov_b32 {sBud}, 0
    v_mov_b32 {tmp}, s2
    v_add_u32 {tmp}, 1, {tmp}
    buffer_store_dword {tmp}, off, {sDBG}, 0 offset:{4 * code}
    s_branch {done}""")


def bitop(f):
    v = 0
    for i in range(8):
        if f((i >> 2) & 1, (i >> 1) & 1, i & 1):
            v |= 1 << i
    return "bitop3:0x%x" % v


XOR_OR = bitop(lambda x, y, z: (x ^ y) | z)
XOR_AND = bitop(lambda x, y, z: (x ^ y) & z)
TAG_W = bitop(lambda d, t, i: (1 - t) if i else (d | t))


def mfma(o, d, x, y, c="0", t="f16"):
    o(f"v_mfma_f32_16x16x32_{t} {d}, {x}, {y}, {c}")


def trig(o, thetas, tc, ts, post):
    n = len(thetas)
    for b in range(0, n, 4):
        idx = list(range(b, min(b + 4, n)))
        for i in idx:
            o(thetas[i].format(t=ts[i - b]))
        for i in idx:
            o(f"v_cos_f32 {tc[i - b]}, {ts[i - b]}")
        for i in idx:
            o(f"v_sin_f32 {ts[i - b]}, {ts[i - b]}")
        for i in idx:
            post(i, tc[i - b], ts[i - b])


def lin(n, step, base):
    if n == 0:
        return f"v_mov_b32 {{t}}, {base}"
    if n in (1, 2, 4):
        return f"v_fma_f32 {{t}}, {float(n)}, {step}, {base}"
    return f"v_fmamk_f32 {{t}}, {step}, {fl(n)}, {base}"


def cmul_fwd(o, dst, x, w, tmp):
    o(f"v_pk_mul_f16 {tmp}, {x}, {w} op_sel:[0,0] op_sel_hi:[1,0]")
    return f"v_pk_fma_f16 {dst}, {x}, {w}, {tmp} op_sel:[1,1,0] op_sel_hi:[0,1,1] neg_hi:[1,0,0]"


def cmul_swap(o, dst, x, w, tmp):
    o(f"v_pk_mul_f16 {tmp}, {x}, {w} op_sel:[0,1] op_sel_hi:[0,0]")
    return f"v_pk_fma_f16 {dst}, {x}, {w}, {tmp} op_sel:[1,0,0] op_sel_hi:[1,1,1] neg_hi:[1,0,0]"


def scalar_q(o, p, woff, par):
    o(f"""s_lshl_b32 {sA}, {p}, 1
    s_lshr_b32 {sB}, {sW}, 2
    s_add_u32 {sA}, {sA}, {sB}
    s_lshr_b32 {sB}, {sA}, 6
    s_lshl_b32 {sB}, {sB}, 5
    s_and_b32 {sC}, {sA}, 31
    s_add_u32 {sB}, {sB}, {sC}
    s_bfe_u32 {sA}, {sA}, 0x10005
    s_lshl_b32 {sA}, {sA}, 2
    s_and_b32 {sC}, {sW}, 3
    s_add_u32 {sA}, {sA}, {sC}
    s_lshl_b32 {sA}, {sA}, 8
    s_bfe_u32 {sC}, {sB}, 0x40002
    s_add_u32 {sA}, {sA}, {sC}
    s_and_b32 {sC}, {sB}, 0xc0
    s_add_u32 {sA}, {sA}, {sC}
    s_and_b32 {sC}, {sB}, 3
    s_lshl_b32 {sC}, {sC}, 4
    s_add_u32 {sA}, {sA}, {sC}
    s_and_b32 {par}, {sA}, 1
    s_mul_i32 {woff}, {sA}, 642
    s_and_b32 {woff}, {woff}, -4""")


vL = R.alloc("lane")
vL4 = R.alloc("lane4")
vFI = R.alloc("fI")
vFG = R.alloc("fG")
vXr = R.alloc("xr", 5)
vRd = R.alloc("stage_rd", 2, 1)
vF = R.alloc("F16", 8)
vTmp = R.alloc("tmp", 8)
vTc, vTs = vTmp[0:4], vTmp[4:8]
vY = R.alloc("tagspread")

a(f"""s_cmp_ge_u32 s2, 256
s_cbranch_scc1 L_end
s_load_dwordx2 s[4:5], s[0:1], 0
s_load_dwordx2 s[16:17], s[0:1], 8
s_load_dwordx2 s[20:21], s[0:1], 16
s_load_dwordx2 s[12:13], s[0:1], 64
s_load_dwordx2 s[24:25], s[0:1], 32
s_load_dwordx2 s[28:29], s[0:1], 40
s_load_dwordx2 s[8:9], s[0:1], 48
s_load_dwordx2 s[32:33], s[0:1], 56
v_lshrrev_b32 {vL4}, 6, v0
v_and_b32 {vL}, 63, v0
s_mov_b32 m0, 0
v_readfirstlane_b32 {sW}, {vL4}
v_lshlrev_b32 {vL4}, 2, {vL}
s_mov_b32 s6, 2621440
s_mov_b32 s7, 0x20000
s_mov_b32 s10, 2621440
s_mov_b32 s11, 0x20000
s_mov_b32 s14, {WS_END}
s_mov_b32 s15, 0x20000
s_mov_b32 s18, 1314816
s_mov_b32 s19, 0x20000
s_mov_b32 s22, 1314816
s_mov_b32 s23, 0x20000
s_mov_b32 s26, 1314816
s_mov_b32 s27, 0x20000
s_mov_b32 s30, 1314816
s_mov_b32 s31, 0x20000
s_mov_b32 s34, 256
s_mov_b32 s35, 0x20000
s_and_b32 {sP}, s2, 127
s_lshl_b32 {sP}, {sP}, 1
s_lshr_b32 {sA}, s2, 7
s_or_b32 {sP}, {sP}, {sA}
s_lshl_b32 {sA}, {sP}, 1
s_lshr_b32 {sB}, {sW}, 2
s_add_u32 {sA}, {sA}, {sB}
s_bfe_u32 {sB}, {sA}, 0x20004
s_lshl_b32 {sB}, {sB}, 2
s_and_b32 {sC}, {sW}, 3
s_add_u32 {sB}, {sB}, {sC}
s_lshl_b32 {sB}, {sB}, 7
s_and_b32 {sC}, {sA}, 15
s_lshl_b32 {sC}, {sC}, 3
s_add_u32 {sB}, {sB}, {sC}
s_lshr_b32 {sC}, {sA}, 6
s_add_u32 {sB}, {sB}, {sC}
s_mul_i32 {sXoff}, {sB}, 1280""")
scalar_q(a, sP, sWoff, sPar)
vL12 = R.alloc("lane12")
vWr = R.alloc("wr", 3)
vWi = R.alloc("wi", 3)
a(f"""v_mul_u32_u24 {vL12}, 12, {vL}
s_waitcnt lgkmcnt(0)""")
for e in range(5):
    a(f"buffer_load_dword {vXr[e]}, {vL4}, {sX}, {sXoff} offen offset:{256 * e}")
a(f"""s_mov_b32 exec_hi, 0x3fffff
buffer_load_dwordx3 {vWr}, {vL12}, {sWRA}, {sWoff} offen
buffer_load_dwordx3 {vWi}, {vL12}, {sWIA}, {sWoff} offen
s_mov_b32 exec_hi, -1
s_load_dword {sE}, s[12:13], {WS_EPOCH}""")
stamp()
a(f"""s_mov_b32 {sBud}, 0x8000
s_mov_b32 {sM1}, 0x00010001
s_mov_b32 {sM14}, 0x40004000
s_mov_b32 {sSelLo}, 0x05040100
s_mov_b32 {sSelHi}, 0x07060302
s_mov_b32 {sSign}, 0x80008000
s_lshl_b32 {sCoff}, s2, 14""")

vNeg = R.alloc("neg", 4)
vT16 = R.alloc("tid16")
a(f"""v_lshlrev_b32 {vT16}, 4, v0
v_mov_b32 {vNeg[0]}, -1
v_mov_b32 {vNeg[1]}, -1
v_mov_b32 {vNeg[2]}, -1
v_mov_b32 {vNeg[3]}, -1
v_mov_b32 {vTmp[0]}, 0
v_mov_b32 {vTmp[1]}, 0
v_mov_b32 {vTmp[2]}, {L_MAX}
ds_write_b64 {vTmp[2]}, {vTmp[0:2]}
s_cmp_lt_u32 s2, 160
s_cbranch_scc1 L_nopoison
s_lshl_b32 {sA}, s2, 7
s_add_u32 {sA}, {sA}, {WS_TRIG - 160 * 128}
s_mov_b64 exec, 1
buffer_store_dword {vNeg[0]}, off, {sWS}, {sA} sc1
s_mov_b64 exec, -1
s_cmp_ge_u32 s2, 192
s_cbranch_scc1 L_nopoison
s_sub_u32 {sB}, s2, 160
s_mul_i32 {sPartOff}, {sB}, 20480
s_add_u32 {sPartOff}, {sPartOff}, {WS_PART}
s_add_u32 {sA}, {sPartOff}, 8192
s_add_u32 {sC}, {sPartOff}, 12288
buffer_store_dwordx4 {vNeg}, {vT16}, {sWS}, {sPartOff} offen sc1
buffer_store_dwordx4 {vNeg}, {vT16}, {sWS}, {sA} offen sc1
buffer_store_dwordx4 {vNeg}, {vT16}, {sWS}, {sC} offen sc1
v_min_u32 {vTmp[0]}, 383, v0
v_lshrrev_b32 {vTmp[1]}, 4, {vTmp[0]}
v_and_b32 {vTmp[0]}, 15, {vTmp[0]}
v_lshlrev_b32 {vTmp[0]}, 4, {vTmp[0]}
v_lshl_add_u32 {vTmp[0]}, {vTmp[1]}, 13, {vTmp[0]}
s_lshl_b32 {sA}, {sB}, 8
s_add_u32 {sRsOff}, {sA}, {WS_RS}
buffer_store_dwordx4 {vNeg}, {vTmp[0]}, {sWS}, {sRsOff} offen sc1
L_nopoison:""")

vBc = R.alloc("Bc", 4)
vBs = R.alloc("Bs", 4)
vTw = R.alloc("Tw0", 8)
vMO = R.alloc("MO", 8)
vK1 = R.alloc("fK1")
vA0 = R.alloc("ang0")
vA1 = R.alloc("ang1")
vSw = R.alloc("stage_wd", 2, 1)
vSwW = R.alloc("stage_ww")
vGo = R.alloc("copy_go", 2, 1)
a(f"""v_and_b32 {vTmp[0]}, 15, {vL}
v_lshrrev_b32 {vTmp[1]}, 4, {vL}
v_lshrrev_b32 {vTmp[2]}, 2, {vTmp[0]}
v_sub_u32 {vTmp[2]}, {vTmp[0]}, {vTmp[2]}
v_cvt_f32_u32 {vFI}, {vTmp[0]}
v_cvt_f32_u32 {vFG}, {vTmp[1]}
v_cvt_f32_u32 {vK1}, {vTmp[2]}
s_mul_i32 {sA}, {sW}, {ROW * 4}
s_lshr_b32 {sB}, {sW}, 2
s_lshl_b32 {sB}, {sB}, 6
s_add_u32 {sA}, {sA}, {sB}
v_mul_u32_u24 {vTmp[0]}, 80, {vTmp[0]}
v_mad_u32_u24 {vTmp[0]}, {vTmp[1]}, 12, {vTmp[0]}
s_add_u32 {sB}, {sA}, {L_SH}
v_add_u32 {vSw[0]}, {sB}, {vTmp[0]}
s_add_u32 {sB}, {sB}, {318 * 4}
v_sub_u32 {vSw[1]}, {sB}, {vTmp[0]}
v_lshl_add_u32 {vSwW}, {vL12}, 1, {sA}
v_bfe_u32 {vTmp[0]}, {vL}, 1, 1
v_mul_u32_u24 {vTmp[0]}, {(4 * ROW + 16) * 4}, {vTmp[0]}
v_lshrrev_b32 {vTmp[1]}, 2, {vL}
v_and_b32 {vTmp[2]}, 1, {vL}
v_lshl_add_u32 {vTmp[3]}, {vTmp[1]}, 1, {vTmp[2]}
v_lshl_add_u32 {vTmp[3]}, {vTmp[3]}, 2, {vTmp[0]}
s_mul_i32 {sA}, {sW}, 160
s_add_u32 {sA}, {sA}, 4
v_add_u32 {vRd[0]}, {sA}, {vTmp[3]}
v_add_u32 {vRd[1]}, 128, {vRd[0]}
v_mul_u32_u24 {vTmp[3]}, {(4 * ROW + 16) * 4}, {vTmp[2]}
v_add_u32 {vTmp[3]}, {321 * 4}, {vTmp[3]}
v_cmp_gt_u32 {sPair}, 16, {vL}
v_cndmask_b32 {vRd[1]}, {vTmp[3]}, {vRd[1]}, {sPair}
v_and_b32 {vTmp[0]}, 3, {vL}
v_lshlrev_b32 {vTmp[0]}, 4, {vTmp[0]}
v_lshl_add_u32 {vTmp[0]}, {vTmp[1]}, 14, {vTmp[0]}
s_mul_i32 {sA}, {sW}, {20 * 16384}
s_lshl_b32 {sB}, {sP}, 6
s_add_u32 {sA}, {sA}, {sB}
s_add_u32 {sA}, {sA}, {WS_H}
v_add_u32 {vGo[0]}, {sA}, {vTmp[0]}
v_add_u32 {vGo[1]}, {16 * 16384}, {vGo[0]}
s_lshl_b32 {sB}, {sP}, 5
s_add_u32 {sB}, {sB}, {WS_SIG}
v_lshl_add_u32 {vTmp[3]}, {vTmp[2]}, 4, {sB}
v_cndmask_b32 {vGo[1]}, {vTmp[3]}, {vGo[1]}, {sPair}
s_cmp_eq_u32 {sW}, 0
s_mov_b32 s50, 0xffff
s_cselect_b32 s50, 0x3ffff, s50
s_mov_b32 s51, 0""")
vKeepC = R.alloc("keepc")
vKeepS = R.alloc("keeps")
a(f"""v_mul_f32 {vA1}, {fl(0.2)}, {vK1}
v_mul_f32 {vA0}, {vFG}, {vA1}
v_mul_f32 {vA0}, 0.25, {vA0}""".replace("0.25", fl(0.25)))


def post_b1(i, c, s):
    if i == 4:
        a(f"v_cvt_pk_f16_f32 {vBc[2]}, {c}, 0\nv_cvt_pk_f16_f32 {vBs[2]}, -{s}, 0")
    elif i % 2 == 1:
        a(f"v_cvt_pk_f16_f32 {vBc[i // 2]}, {vTc[i - 1]}, {c}\nv_cvt_pk_f16_f32 {vBs[i // 2]}, -{vTs[i - 1]}, -{s}")


trig(a, [lin(e, vA1, vA0) for e in range(5)], vTc, vTs, post_b1)
a(f"""v_mov_b32 {vBc[3]}, 0
v_mov_b32 {vBs[3]}, 0
v_mul_f32 {vA1}, {fl(1 / 640)}, {vK1}
v_mul_f32 {vA0}, {vFG}, {vA1}
v_mul_f32 {vA0}, {fl(8.0)}, {vA0}""")


def post_tw0(i, c, s):
    a(f"""v_mul_f32 {c}, {fl(1 / 32)}, {c}
    v_mul_f32 {s}, {fl(1 / 32)}, {s}
    v_cvt_pk_f16_f32 {vTw[4 * (i & 1) + (i >> 1)]}, {c}, {s}""")


trig(a, [lin(n, vA1, vA0) for n in range(8)], vTc, vTs, post_tw0)


def post_fwd(dst, t="f16"):
    def f(i, c, s):
        a(f"v_cvt_pk_{t}_f32 {dst[i]}, {c}, {s}\nv_cvt_pk_{t}_f32 {dst[4 + i]}, -{s}, {c}")
    return f


a(f"""v_mul_f32 {vA1}, {fl(1 / 16)}, {vFI}
v_mul_f32 {vA0}, {vFG}, {vA1}
v_mul_f32 {vA0}, 4.0, {vA0}""")
trig(a, [lin(r, vA1, vA0) for r in range(4)], vTc, vTs, post_fwd(vF))
a(f"v_fma_f32 {vA0}, 0.5, {vA1}, {vA0}")
trig(a, [lin(r, vA1, vA0) for r in range(4)], vTc, vTs, post_fwd(vMO))
R.release("keepc", "keeps")

vTgH = R.alloc("tagH", 4)
vTgH2 = R.alloc("tagH2", 4)
vTgW = R.alloc("tagW", 4)
vM2 = R.alloc("mask2")


def tag_spread(o, dst, u):
    o(f"""v_mad_u32_u24 {dst}, {u}, {sA}, 1
    v_add_u32 {dst}, {sE}, {dst}
    v_and_b32 {vTmp[7]}, 0xaa, {dst}
    v_and_b32 {dst}, 0x55, {dst}
    v_lshl_or_b32 {dst}, {vTmp[7]}, 15, {dst}""")


a(f"""s_waitcnt lgkmcnt(0)
s_mov_b32 {sA}, 67
v_and_b32 {vTmp[0]}, 3, {vL}""")
tag_spread(a, vY, vTmp[0])
a(f"""v_mov_b32 {vTmp[1]}, 0xff
v_mov_b32 {vM2}, {sM1}
v_cndmask_b32 {vM2}, {vTmp[1]}, {vM2}, {sPair}""")
for i in range(4):
    a(f"""v_lshrrev_b32 {vTgH[i]}, {2 * i}, {vY}
    v_lshlrev_b32 {vTgW[i]}, {14 - 2 * i}, {vY}
    s_add_u32 {sB}, {sE}, {1 + 67 * i}
    v_mov_b32 {vTmp[1]}, {sB}
    v_and_b32 {vTgW[i]}, {sM14}, {vTgW[i]}
    v_cndmask_b32 {vTgH2[i]}, {vTmp[1]}, {vTgH[i]}, {sPair}""")
stamp()

vWp = R.alloc("wp", 8)
vCo = R.alloc("copy", 8)
vRdW = R.alloc("stage_rdw", 2, 1)


def w_stage(o, wr, wi, region):
    for i in range(3):
        o(f"""v_perm_b32 {vWp[2 * i]}, {wi[i]}, {wr[i]}, {sSelLo}
        v_perm_b32 {vWp[2 * i + 1]}, {wi[i]}, {wr[i]}, {sSelHi}""")
    o("s_mov_b32 exec_hi, 0x3fffff")
    for i in range(3):
        o(f"ds_write_b64 {vSwW}, {vWp[2 * i:2 * i + 2]} offset:{region + 8 * i}")
    o("s_mov_b32 exec_hi, -1")


def stage_read(o, rd):
    for k in range(2):
        o(f"""ds_read2st64_b32 {vCo[4 * k:4 * k + 2]}, {rd[k]} offset0:0 offset1:6
        ds_read2st64_b32 {vCo[4 * k + 2:4 * k + 4]}, {rd[k]} offset0:12 offset1:18""")


def w_addr(o, par, region):
    o(f"""s_lshl_b32 {sA}, {par}, 2
    s_add_u32 {sA}, {sA}, {region}
    v_add_u32 {vRdW[0]}, {sA}, {vRd[0]}
    v_add_u32 {vRdW[1]}, 128, {vRdW[0]}
    v_cndmask_b32 {vRdW[1]}, {vRdW[0]}, {vRdW[1]}, {sPair}""")


def w_copy_out(o, soff):
    o(f"""v_or3_b32 {vWp[0]}, {vCo[0]}, {vCo[1]}, {vCo[2]}
    v_or3_b32 {vWp[1]}, {vCo[3]}, {vCo[4]}, {vCo[5]}
    v_or3_b32 {vWp[0]}, {vCo[6]}, {vCo[7]}, {vWp[0]}
    v_bitop3_b32 {vWp[0]}, {vWp[0]}, {vWp[1]}, {sM14} {bitop(lambda x, y, m: (x | y) & m)}
    v_cmp_ne_u32 vcc, 0, {vWp[0]}
    s_cmp_eq_u64 vcc, 0
    s_cselect_b32 {sD}, 0, {sM14}""")
    for i in range(8):
        o(f"v_bitop3_b32 {vCo[i]}, {vCo[i]}, {vTgW[i & 3]}, {sD} {TAG_W}")
    o(f"""buffer_store_dwordx4 {vCo[0:4]}, {vGo[0]}, {sWS}, {soff} offen sc1
    s_mov_b64 exec, 0xffff
    buffer_store_dwordx4 {vCo[4:8]}, {vGo[1]}, {sWS}, {soff} offen sc1
    s_mov_b64 exec, -1""")


vU = R.alloc("xu", 10, 2)
vS1 = R.alloc("sum1")
vS2 = R.alloc("sum2")
vA = R.alloc("rowA", 8)
vD = R.alloc("rowD", 16)
w_addr(a, sPar, L_SW)
a(f"""v_add_u32 {vRd[0]}, {L_SH}, {vRd[0]}
v_add_u32 {vRd[1]}, {L_SH}, {vRd[1]}
s_mov_b32 {sC}, 0x3f803f80
s_mov_b32 {sWreg}, {WS_WA - WS_H}
v_mov_b32 {vA[3]}, 0
v_mov_b32 {vA[7]}, 0
s_waitcnt vmcnt(0)""")
stamp()
w_stage(a, vWr, vWi, L_SW)
a(f"v_dot2_f32_bf16 {vS1}, {vXr[0]}, {sC}, 0\nv_dot2_f32_bf16 {vS2}, {vXr[0]}, {vXr[0]}, 0")
for e in range(1, 5):
    a(f"v_dot2_f32_bf16 {vS1}, {vXr[e]}, {sC}, {vS1}\nv_dot2_f32_bf16 {vS2}, {vXr[e]}, {vXr[e]}, {vS2}")
unp = []
for e in range(5):
    unp.append(f"v_lshlrev_b32 {vU[2 * e]}, 16, {vXr[e]}")
    unp.append(f"v_and_b32 {vU[2 * e + 1]}, 0xffff0000, {vXr[e]}")
a(f"""s_waitcnt lgkmcnt(0)
s_barrier""")
stage_read(a, vRdW)
a(f"""v_permlane32_swap_b32 {vS1}, {vS2}
v_add_f32 {vS1}, {vS1}, {vS2}""")
for k, n in enumerate((8, 4, 2, 1)):
    a(unp[2 * k])
    a(unp[2 * k + 1])
    a(f"v_add_f32_dpp {vS1}, {vS1}, {vS1} row_ror:{n} row_mask:0xf bank_mask:0xf")
a(unp[8])
a(unp[9])
a(f"""v_add_f32_dpp {vS1}, {vS1}, {vS1} row_bcast:15 row_mask:0xa bank_mask:0xf
s_waitcnt lgkmcnt(0)
v_readlane_b32 {sSum}, {vS1}, 16
v_readlane_b32 {sSq}, {vS1}, 48""")
w_copy_out(a, sWreg)
a(f"""v_mov_b32 {vTmp[3]}, {fl(1 / 640)}
v_mul_f32 {vTmp[0]}, {sSum}, {vTmp[3]}
v_mul_f32 {vTmp[1]}, {vTmp[0]}, {vTmp[0]}
v_fma_f32 {vTmp[1]}, {sSq}, {vTmp[3]}, -{vTmp[1]}
v_max_f32 {vTmp[1]}, 0, {vTmp[1]}
v_add_f32 {vTmp[1]}, {fl(1e-5)}, {vTmp[1]}
v_rsq_f32 {vTmp[2]}, {vTmp[1]}
v_mul_f32 {vTmp[0]}, {vTmp[0]}, {vTmp[2]}""")
for i in range(10):
    a(f"v_fma_f32 {vU[i]}, {vU[i]}, {vTmp[2]}, -{vTmp[0]}")
for t in range(2):
    a(f"""v_cvt_pk_f16_f32 {vA[4 * t]}, {vU[t]}, {vU[2 + t]}
    v_cvt_pk_f16_f32 {vA[4 * t + 1]}, {vU[4 + t]}, {vU[6 + t]}
    v_cvt_pk_f16_f32 {vA[4 * t + 2]}, {vU[8 + t]}, 0""")
a(f"v_mul_f32 {vTmp[1]}, {vTmp[1]}, {vTmp[2]}")
for t in range(2):
    mfma(a, vD[8 * t:8 * t + 4], vA[4 * t:4 * t + 4], vBc)
    mfma(a, vD[8 * t + 4:8 * t + 8], vA[4 * t:4 * t + 4], vBs)
a(f"""s_mov_b64 exec, 1
ds_write_b32 {vSw[0]}, {vTmp[1]} offset:{321 * 4}
s_mov_b64 exec, -1""")
for t in range(2):
    for r in range(4):
        a(f"v_cvt_pk_f16_f32 {vU[r]}, {vD[8 * t + r]}, {vD[8 * t + 4 + r]}")
    fin = [cmul_fwd(a, vA[4 * t + r], vU[r], vTw[4 * t + r], vU[4 + r]) for r in range(4)]
    for s in fin:
        a(s)
    m = vF if t == 0 else vMO
    mfma(a, vD[8 * t:8 * t + 4], vA[4 * t:4 * t + 4], m[0:4])
    mfma(a, vD[8 * t + 4:8 * t + 8], vA[4 * t:4 * t + 4], m[4:8])
for t in range(2):
    for r in range(3):
        a(f"v_cvt_pk_f16_f32 {vU[4 * t + r]}, {vD[8 * t + r]}, {vD[8 * t + 4 + r]}")
for r in range(3):
    a(f"v_pk_add_f16 {vA[r]}, {vU[r]}, {vU[4 + r]}")
for r in range(3):
    a(f"v_pk_add_f16 {vA[4 + r]}, {vU[r]}, {vU[4 + r]} neg_lo:[0,1] neg_hi:[1,0]")
a(f"""ds_write2_b32 {vSw[0]}, {vA[0]}, {vA[1]} offset0:0 offset1:1
ds_write_b32 {vSw[0]}, {vA[2]} offset:8
ds_write2_b32 {vSw[1]}, {vA[4]}, {vA[5]} offset0:2 offset1:1
ds_write_b32 {vSw[1]}, {vA[6]}
s_waitcnt lgkmcnt(0)
s_barrier""")
stage_read(a, vRd)
a("s_waitcnt lgkmcnt(2)")
for i in range(4):
    a(f"v_bfi_b32 {vCo[i]}, {sM1}, {vTgH[i]}, {vCo[i]}")
a(f"""buffer_store_dwordx4 {vCo[0:4]}, {vGo[0]}, {sWS}, 0 offen sc1
s_waitcnt lgkmcnt(0)""")
for i in range(4):
    a(f"v_bfi_b32 {vCo[4 + i]}, {vM2}, {vTgH2[i]}, {vCo[4 + i]}")
a(f"""s_mov_b64 exec, {sEx2}
buffer_store_dwordx4 {vCo[4:8]}, {vGo[1]}, {sWS}, 0 offen sc1
s_mov_b64 exec, -1""")
stamp()
a(f"""s_cmp_ge_u32 s2, 160
s_cbranch_scc1 L_noncolumn""")
R.release("Bc", "Bs", "Tw0", "MO", "xu", "sum1", "sum2", "rowA", "rowD", "tagH", "tagH2", "mask2", "stage_wd",
          "wr", "wi")

vRA = R.alloc("RA", 32)
vT1c = R.alloc("Tw1c", 6, 2)
vT1s = R.alloc("Tw1s", 6, 2)
vRB = R.alloc("RB", 8)
vOut = R.alloc("outacc", 16)
vGa = R.alloc("gather_ad", 2, 1)
vG2 = R.alloc("t2_go", 2, 1)


def r1_consts():
    for t in range(2):
        sg = "" if t == 0 else "-"
        ns = "-" if t == 0 else ""
        a(f"""v_fma_f32 {vK1}, 2.0, {vFI}, {float(t) if t else 0}
        v_mul_f32 {vA1}, {fl(1 / 32)}, {vK1}
        v_mul_f32 {vA0}, {vFG}, {vA1}
        v_mul_f32 {vA0}, 4.0, {vA0}""")

        def post_ra(i, c, s):
            a(f"""v_cvt_pk_bf16_f32 {vRA[16 * t + i]}, {c}, -{s}
            v_cvt_pk_bf16_f32 {vRA[16 * t + 4 + i]}, {s}, {c}
            v_cvt_pk_bf16_f32 {vRA[16 * t + 8 + i]}, {sg}{c}, {sg}{s}
            v_cvt_pk_bf16_f32 {vRA[16 * t + 12 + i]}, {sg}{s}, {ns}{c}""")
        trig(a, [lin(r, vA1, vA0) for r in range(4)], vTc, vTs, post_ra)
        a(f"""v_mul_f32 {vA1}, {fl(1 / 640)}, {vK1}
        v_mul_f32 {vA0}, {vFG}, {vA1}
        v_mul_f32 {vA0}, {fl(3.0)}, {vA0}""")

        def post_t1(i, c, s):
            a(f"v_mul_f32 {vT1c[3 * t + i]}, {fl(0.1)}, {c}\nv_mul_f32 {vT1s[3 * t + i]}, {fl(0.1)}, {s}")
        trig(a, [lin(r, vA1, vA0) for r in range(3)], vTc, vTs, post_t1)
    for tl in range(2):
        a(f"v_bfe_u32 {vTmp[0]}, {vL}, 2, 2")
        if tl == 0:
            a(f"v_and_b32 {vTmp[1]}, 3, {vL}\nv_lshl_add_u32 {vTmp[0]}, {vTmp[1]}, 2, {vTmp[0]}")
        else:
            a(f"v_add_u32 {vTmp[0]}, 16, {vTmp[0]}")
        a(f"""v_cvt_f32_u32 {vA1}, {vTmp[0]}
        v_mul_f32 {vA1}, {fl(0.05)}, {vA1}
        v_mul_f32 {vA0}, {vFG}, {vA1}
        v_mul_f32 {vA0}, {fl(3.0)}, {vA0}""")

        def post_rb(i, c, s):
            a(f"v_cvt_pk_bf16_f32 {vRB[4 * tl + i]}, {c}, -{s}")
        trig(a, [lin(r, vA1, vA0) for r in range(3)], vTc, vTs, post_rb)
        a(f"v_mov_b32 {vRB[4 * tl + 3]}, 0")
    for e in range(5):
        k = e if e < 4 else 4
        a(f"v_lshlrev_b32 {vOut[k]}, 16, {vXr[e]}\nv_and_b32 {vOut[8 + k]}, 0xffff0000, {vXr[e]}")
    for k in (5, 6, 7, 13, 14, 15):
        a(f"v_mov_b32 {vOut[k]}, 0")
    a(f"""v_and_b32 {vTmp[0]}, 15, {vL}
    v_lshrrev_b32 {vTmp[1]}, 2, {vTmp[0]}
    v_sub_u32 {vTmp[0]}, {vTmp[0]}, {vTmp[1]}
    v_lshrrev_b32 {vTmp[1]}, 4, {vL}
    v_mul_u32_u24 {vTmp[1]}, 80, {vTmp[1]}
    v_add_lshl_u32 {vTmp[0]}, {vTmp[0]}, {vTmp[1]}, 2
    s_mul_i32 {sA}, {sW}, {ROW * 4}
    s_lshr_b32 {sB}, {sW}, 2
    s_lshl_b32 {sB}, {sB}, 6
    s_add_u32 {sA}, {sA}, {sB}
    s_add_u32 {sA}, {sA}, {L_SH}
    v_add_u32 {vGa[0]}, {sA}, {vTmp[0]}
    s_add_u32 {sA}, {sA}, {260 * 4}
    v_sub_u32 {vGa[1]}, {sA}, {vTmp[0]}
    v_lshrrev_b32 {vTmp[0]}, 2, {vL}
    v_and_b32 {vTmp[1]}, 1, {vL}
    v_lshlrev_b32 {vTmp[1]}, 6, {vTmp[1]}
    v_lshl_add_u32 {vTmp[0]}, {vTmp[0]}, 14, {vTmp[1]}
    v_and_b32 {vTmp[1]}, 2, {vL}
    v_lshl_add_u32 {vTmp[0]}, {vTmp[1]}, 3, {vTmp[0]}
    s_mul_i32 {sA}, {sW}, {20 * 16384}
    s_lshr_b32 {sB}, {sP}, 1
    s_lshl_b32 {sB}, {sB}, 7
    s_add_u32 {sA}, {sA}, {sB}
    s_and_b32 {sB}, {sP}, 1
    s_lshl_b32 {sB}, {sB}, 5
    s_add_u32 {sA}, {sA}, {sB}
    s_add_u32 {sA}, {sA}, {WS_T2}
    v_add_u32 {vG2[0]}, {sA}, {vTmp[0]}
    v_add_u32 {vG2[1]}, {16 * 16384}, {vG2[0]}""")


saved_free, saved_named = set(R.free), dict(R.named)
R.release("tagW", "wp", "copy", "stage_rdw", "stage_ww", "copy_go", "lane12")
vWc = R.alloc("Wcur", 8)
vWn = R.alloc("Wnext", 8)
vH = R.alloc("H", 8)
vSg = R.alloc("sig", 4)
vXh = R.alloc("Xh", 8)
vXs = R.alloc("X", 16)
vNu = R.alloc("nu", 4)
vFp = R.alloc("fpk", 2)
vTf = R.alloc("Tf", 4)
vTi = R.alloc("Ti", 4)
vMf = R.alloc("Mf", 8)
vMi = R.alloc("Mi", 8)
vG8 = R.alloc("G8", 8)
vF1 = R.alloc("Fre1", 4)
vDd = R.alloc("D", 16)
vP = R.alloc("P", 8)
vQ = R.alloc("Q", 8)
vT32 = R.alloc("tid32")
vY1 = R.alloc("tagspread1")
vXw = R.alloc("xc_own")
vXm = R.alloc("xc_mid")
vPo = R.alloc("part_go")


def w_load(region):
    a(f"""s_add_u32 {sA}, {sCoff}, {region}
    buffer_load_dwordx4 {vWn[0:4]}, {vT32}, {sWS}, {sA} offen sc1
    buffer_load_dwordx4 {vWn[4:8]}, {vT32}, {sWS}, {sA} offen offset:16 sc1""")


def w_check(region, srd_r, srd_i, code):
    top, again, ok, slow = lab("wtop"), lab("wagain"), lab("wok"), lab("wslow")
    for j, y in enumerate((vY, vY1)):
        for i in range(4):
            a(f"v_lshlrev_b32 {vQ[4 * j + i]}, {14 - 2 * i}, {y}")
    a(f"s_mov_b32 {sMag}, 0x3fff3fff\n{top}:")
    a(f"v_xor_b32 {vTmp[0]}, {vWn[0]}, {vQ[0]}\nv_xor_b32 {vTmp[1]}, {vWn[4]}, {vQ[4]}")
    for i in range(1, 4):
        a(f"""v_bitop3_b32 {vTmp[0]}, {vWn[i]}, {vQ[i]}, {vTmp[0]} {XOR_OR}
        v_bitop3_b32 {vTmp[1]}, {vWn[4 + i]}, {vQ[4 + i]}, {vTmp[1]} {XOR_OR}""")
    a(f"""v_bitop3_b32 {vTmp[2]}, {vTmp[0]}, {vTmp[1]}, {sM14} {bitop(lambda x, y, m: (x | y) & m)}
    v_cmp_ne_u32 vcc, 0, {vTmp[2]}
    s_cbranch_vccnz {slow}
    {ok}:""")
    t = tail
    t(f"{slow}:")
    t(f"v_bitop3_b32 {vTmp[2]}, {vWn[0]}, {vQ[0]}, {sM14} {XOR_AND}")
    t(f"v_bitop3_b32 {vTmp[3]}, {vWn[4]}, {vQ[4]}, {sM14} {XOR_AND}")
    for i in range(1, 4):
        t(f"""v_bitop3_b32 {vTmp[2]}, {vWn[i]}, {vQ[i]}, {vTmp[2]} {XOR_AND}
        v_bitop3_b32 {vTmp[3]}, {vWn[4 + i]}, {vQ[4 + i]}, {vTmp[3]} {XOR_AND}""")
    gather, to = lab("wgather"), lab("wto")
    t(f"""v_and_b32 {vTmp[0]}, {sM14}, {vTmp[0]}
    v_and_b32 {vTmp[1]}, {sM14}, {vTmp[1]}
    v_xor_b32 {vTmp[2]}, {sM14}, {vTmp[2]}
    v_xor_b32 {vTmp[3]}, {sM14}, {vTmp[3]}
    v_min_u32 {vTmp[0]}, {vTmp[0]}, {vTmp[2]}
    v_min_u32 {vTmp[1]}, {vTmp[1]}, {vTmp[3]}
    v_or_b32 {vTmp[0]}, {vTmp[0]}, {vTmp[1]}
    v_cmp_ne_u32 vcc, 0, {vTmp[0]}
    s_cbranch_vccz {gather}
    s_sub_u32 {sBud}, {sBud}, 1
    s_cbranch_scc1 {to}
    s_add_u32 {sA}, {sCoff}, {region}
    buffer_load_dwordx4 {vWn[0:4]}, {vT32}, {sWS}, {sA} offen sc1
    buffer_load_dwordx4 {vWn[4:8]}, {vT32}, {sWS}, {sA} offen offset:16 sc1
    s_waitcnt vmcnt(0)
    s_branch {top}
    {to}:
    s_mov_b32 {sBud}, 0
    v_mov_b32 {vTmp[0]}, s2
    v_add_u32 {vTmp[0]}, 1, {vTmp[0]}
    buffer_store_dword {vTmp[0]}, off, {sDBG}, 0 offset:{4 * code}
    {gather}:
    v_and_b32 {vTmp[0]}, 31, {vL}
    v_lshl_add_u32 {vTmp[0]}, {sW}, 5, {vTmp[0]}
    v_bfe_u32 {vTmp[1]}, {vTmp[0]}, 2, 4
    v_and_b32 {vTmp[2]}, 0xc0, {vTmp[0]}
    v_add_u32 {vTmp[1]}, {vTmp[1]}, {vTmp[2]}
    v_and_b32 {vTmp[2]}, 3, {vTmp[0]}
    v_lshl_add_u32 {vTmp[1]}, {vTmp[2]}, 4, {vTmp[1]}
    v_lshrrev_b32 {vTmp[2]}, 5, {vL}
    v_lshl_add_u32 {vTmp[1]}, {vTmp[2]}, 10, {vTmp[1]}
    v_mul_u32_u24 {vTmp[1]}, 642, {vTmp[1]}
    s_lshl_b32 {sA}, s2, 2
    s_add_u32 {sA}, {sA}, 2""")
    for r in range(4):
        for j in range(2):
            t(f"""buffer_load_ushort {vWn[4 * j + r]}, {vTmp[1]}, {srd_r}, {sA} offen offset:{2 * j}
            buffer_load_ushort {vQ[4 * j + r]}, {vTmp[1]}, {srd_i}, {sA} offen offset:{2 * j}""")
        t(f"s_add_u32 {sA}, {sA}, {256 * 642}")
    t("s_waitcnt vmcnt(0)")
    for i in range(8):
        t(f"v_lshl_or_b32 {vWn[i]}, {vQ[i]}, 16, {vWn[i]}")
    t(f"""s_mov_b32 {sMag}, 0x7fff7fff
    s_branch {ok}""")


def w_max(slot):
    for i in range(8):
        a(f"v_and_b32 {vQ[i]}, {sMag}, {vWn[i]}")
    for i in range(4):
        a(f"v_pk_max_u16 {vTmp[i]}, {vQ[i]}, {vQ[4 + i]}")
    a(f"""v_pk_max_u16 {vTmp[0]}, {vTmp[0]}, {vTmp[1]}
    v_pk_max_u16 {vTmp[2]}, {vTmp[2]}, {vTmp[3]}
    v_pk_max_u16 {vTmp[0]}, {vTmp[0]}, {vTmp[2]}
    v_lshlrev_b32 {vTmp[1]}, 16, {vTmp[0]}
    v_max_u32 {vTmp[0]}, {vTmp[0]}, {vTmp[1]}
    v_mov_b32 {vTmp[1]}, {L_MAX + 4 * slot}""")
    for n in (8, 4, 2, 1):
        a(f"v_max_u32_dpp {vTmp[0]}, {vTmp[0]}, {vTmp[0]} row_ror:{n} row_mask:0xf bank_mask:0xf")
    a(f"""s_mov_b32 exec_lo, {sM1}
    s_mov_b32 exec_hi, {sM1}
    ds_max_u32 {vTmp[1]}, {vTmp[0]}
    s_mov_b64 exec, -1
    s_waitcnt lgkmcnt(0)
    s_barrier
    ds_read_b32 {vTmp[0]}, {vTmp[1]}
    s_waitcnt lgkmcnt(0)
    v_readfirstlane_b32 {sA}, {vTmp[0]}
    s_lshr_b32 {sA}, {sA}, 23
    s_max_u32 {sA}, {sA}, 90
    s_min_u32 {sA}, {sA}, 200
    s_sub_u32 {sB}, {sA}, 14
    s_mul_i32 {sBias}, {sB}, 0x00800080
    s_sub_u32 {sB}, {sA}, 6
    s_lshl_b32 {sScN}, {sB}, 23
    s_sub_u32 {sB}, 260, {sA}
    s_lshl_b32 {sIscN}, {sB}, 23""")
    for i in range(8):
        a(f"v_pk_sub_u16 {vQ[i]}, {vQ[i]}, {sBias} clamp")
    for i in range(8):
        a(f"v_pk_lshlrev_b16 {vQ[i]}, 3, {vQ[i]} op_sel_hi:[0,1]")


a(f"""v_lshlrev_b32 {vT32}, 5, v0""")
w_load(WS_WA)
a(f"""s_mov_b32 {sA}, 67
v_and_b32 {vTmp[0]}, 1, {vL}
v_lshlrev_b32 {vTmp[0]}, 1, {vTmp[0]}
v_add_u32 {vTmp[1]}, 1, {vTmp[0]}""")
tag_spread(a, vY, vTmp[0])
tag_spread(a, vY1, vTmp[1])
a(f"""v_cvt_f32_u32 {vK1}, {sW}
v_fmamk_f32 {vA0}, {vFG}, {fl(32.0)}, {vK1}
v_mul_f32 {vA1}, {fl(1 / 2048)}, {vFI}
v_mul_f32 {vA0}, {vA0}, {vA1}
v_mul_f32 {vA1}, {fl(8.0)}, {vA1}""")


def post_tf(i, c, s):
    a(f"""v_mul_f32 {c}, {fl(1 / 16)}, {c}
    v_mul_f32 {s}, {fl(1 / 16)}, {s}
    v_cvt_pk_f16_f32 {vTf[i]}, {c}, {s}""")


trig(a, [lin(r, vA1, vA0) for r in range(4)], vTc, vTs, post_tf)
a(f"v_mul_f32 {vA0}, {fl(16.0)}, {vA0}\nv_mul_f32 {vA1}, {fl(16.0)}, {vA1}")
trig(a, [lin(r, vA1, vA0) for r in range(4)], vTc, vTs, post_fwd(vMf))
a(f"""v_fmamk_f32 {vA1}, {vFI}, {fl(8.0)}, {vK1}
v_mul_f32 {vA1}, {fl(1 / 2048)}, {vA1}
v_mul_f32 {vA0}, {vFG}, {vA1}
v_mul_f32 {vA0}, 4.0, {vA0}""")
trig(a, [lin(r, vA1, vA0) for r in range(4)], vTc, vTs,
     lambda i, c, s: a(f"v_cvt_pk_f16_f32 {vTi[i]}, {c}, {s}"))


def h_load():
    a(f"""s_add_u32 {sA}, {sCoff}, {WS_H}
    s_mov_b32 {sB}, {WS_SIG}
    buffer_load_dwordx4 {vH[0:4]}, {vT32}, {sWS}, {sA} offen sc1
    buffer_load_dwordx4 {vH[4:8]}, {vT32}, {sWS}, {sA} offen offset:16 sc1
    buffer_load_dwordx4 {vSg}, {vT16}, {sWS}, {sB} offen sc1""")


h_load()
a(f"v_mul_f32 {vA0}, {fl(16.0)}, {vA0}\nv_mul_f32 {vA1}, {fl(16.0)}, {vA1}")
trig(a, [lin(r, vA1, vA0) for r in range(4)], vTc, vTs,
     lambda i, c, s: a(f"v_cvt_pk_f16_f32 {vMi[i]}, {c}, -{s}\nv_cvt_pk_f16_f32 {vMi[4 + i]}, {s}, {c}"))
a(f"""v_bfe_u32 {vTmp[0]}, {vL}, 3, 1
v_and_b32 {vTmp[1]}, 3, {vL}
v_lshl_add_u32 {vTmp[0]}, {vTmp[0]}, 2, {vTmp[1]}
v_cvt_f32_u32 {vA1}, {vTmp[0]}
v_lshrrev_b32 {vTmp[0]}, 5, {vL}
v_cvt_f32_u32 {vA0}, {vTmp[0]}
v_mul_f32 {vA1}, {fl(0.125)}, {vA1}
v_mul_f32 {vA0}, {vA0}, {vA1}
v_mul_f32 {vA0}, 4.0, {vA0}
v_lshrrev_b32 {vTmp[0]}, 2, {vL}
v_xor_b32 {vTmp[0]}, {vTmp[0]}, {vL}
v_bfe_u32 {vTmp[0]}, {vTmp[0]}, 2, 1
v_add_u32 {vK1}, -1, {vTmp[0]}""")
trig(a, [lin(r, vA1, vA0) for r in range(4)], vTc, vTs, post_fwd(vG8))
for i in range(8):
    a(f"v_and_b32 {vG8[i]}, {vK1}, {vG8[i]}")
a(f"""s_cmp_eq_u32 s2, 159
s_cselect_b32 {sA}, 0, -1
s_cselect_b32 {sS1}, {fl(0.5 ** 0.5)}, 1.0
s_cselect_b32 {sD}, 0x39a8, 0x3c003c00""".replace("s_cselect_b32 %s, 0x39a8, 0x3c003c00" % sD,
                                                  "s_mov_b32 %s, 0x3c003c00\ns_cselect_b32 %s, 0x39a8, %s" % (sD, sD, sD)))
for i in range(4):
    a(f"v_and_b32 {vF1[i]}, {sA}, {vF[i]}")
a(f"""v_mov_b32 {vFp[0]}, {sD}
v_add_u32 {vXw}, {L_XC}, {vT16}
v_lshrrev_b32 {vTmp[0]}, 5, {vL}
v_and_b32 {vTmp[1]}, 31, {vL}
v_lshlrev_b32 {vTmp[1]}, 2, {vTmp[1]}
v_lshl_add_u32 {vTmp[0]}, {vTmp[0]}, 12, {vTmp[1]}
s_lshl_b32 {sA}, {sW}, 7
s_add_u32 {sA}, {sA}, {L_XC}
v_add_u32 {vXm}, {sA}, {vTmp[0]}
v_lshrrev_b32 {vTmp[0]}, 4, v0
v_mul_u32_u24 {vTmp[0]}, 20480, {vTmp[0]}
v_and_b32 {vTmp[1]}, 15, v0
v_lshl_add_u32 {vPo}, {vTmp[1]}, 3, {vTmp[0]}
s_lshl_b32 {sPartOff}, s2, 7
s_add_u32 {sPartOff}, {sPartOff}, {WS_PART}
s_and_b32 {sRsOff}, s2, 7
s_lshl_b32 {sRsOff}, {sRsOff}, 13
s_add_u32 {sRsOff}, {sRsOff}, {WS_RS}
s_mov_b32 {sLayer}, 0""")
stamp()
a("s_waitcnt vmcnt(3)")
w_check(WS_WA, sWRA, sWIA, 1)
stamp()
w_max(0)
for i in range(8):
    a(f"v_bfi_b32 {vWc[i]}, {sSign}, {vWn[i]}, {vQ[i]}")
a(f"s_mov_b32 {sSc}, {sScN}\ns_mov_b32 {sIsc}, {sIscN}")
for j, y in enumerate((vY, vY1)):
    for i in range(4):
        a(f"v_lshrrev_b32 {vQ[4 * j + i]}, {2 * i}, {y}")
stamp()
top, again, ok = lab("htop"), lab("hagain"), lab("hok")
a(f"s_branch {top}\n{again}:")
h_load()
a(f"""{top}:
s_waitcnt vmcnt(0)
v_xor_b32 {vTmp[0]}, {vH[0]}, {vQ[0]}""")
for i in range(1, 8):
    a(f"v_bitop3_b32 {vTmp[0]}, {vH[i]}, {vQ[i]}, {vTmp[0]} {XOR_OR}")
a(f"s_add_u32 {sA}, {sE}, 1\nv_xor_b32 {vTmp[1]}, {sA}, {vSg[0]}")
for i in range(1, 4):
    a(f"s_add_u32 {sA}, {sA}, 67\nv_bitop3_b32 {vTmp[1]}, {vSg[i]}, {sA}, {vTmp[1]} {XOR_OR}")
a(f"""v_and_b32 {vTmp[1]}, 0xff, {vTmp[1]}
v_and_or_b32 {vTmp[0]}, {vTmp[0]}, {sM1}, {vTmp[1]}
v_cmp_ne_u32 vcc, 0, {vTmp[0]}
s_cbranch_vccz {ok}""")
spin_tail(again, ok, 2, vTmp[0])
a(f"{ok}:")
stamp()
for r in range(4):
    a(f"v_pk_mul_f16 {vH[4 + r]}, {vH[4 + r]}, {vFp[0]}")
for r in range(4):
    a(f"v_mov_b32 {vP[r]}, {vH[r]}\nv_mov_b32 {vP[4 + r]}, {vH[4 + r]}")
a("s_branch L_layer_go")


def Dre(c): return vDd[8 * c:8 * c + 4]
def Dim(c): return vDd[8 * c + 4:8 * c + 8]
def Xre(c): return vXs[8 * c:8 * c + 4]
def Xim(c): return vXs[8 * c + 4:8 * c + 8]
def Pq(c): return vP[4 * c:4 * c + 4]
def Qq(c): return vQ[4 * c:4 * c + 4]


def cvt4(dst, c):
    for r in range(4):
        a(f"v_cvt_pk_f16_f32 {dst[r]}, {Dre(c)[r]}, {Dim(c)[r]}")


def tw4(c, w, fn):
    cvt4(Qq(c), c)
    fin = [fn(a, Pq(c)[r], Qq(c)[r], w[r], vTmp[4 * c + r]) for r in range(4)]
    for s in fin:
        a(s)


a("L_layer:")
for c in range(2):
    for r in range(4):
        a(f"v_pk_mul_f16 {Pq(c)[r]}, {vXh[4 * c + r]}, {vFp[r >> 1]} op_sel:[0,{r & 1}] op_sel_hi:[1,{r & 1}]")
a("L_layer_go:")
for c in range(2):
    mfma(a, Dre(c), Pq(c), vF[0:4])
    mfma(a, Dim(c), Pq(c), vF[4:8])
for c in range(2):
    tw4(c, vTf, cmul_fwd)
    mfma(a, Dre(c), vMf[0:4], Pq(c))
    mfma(a, Dim(c), vMf[4:8], Pq(c))
for c in range(2):
    cvt4(Qq(c), c)
    a(f"ds_write_b128 {vXw}, {Qq(c)} offset:{8192 * c}")
a(f"""s_cmp_lg_u32 {sLayer}, 0
s_cbranch_scc1 L_noinit""")
for r in range(4):
    a(f"v_mul_f32 {vNu[r]}, {sIsc}, {vSg[r]}")
for c in range(2):
    for r in range(4):
        a(f"""v_fma_mix_f32 {Xre(c)[r]}, {vH[4 * c + r]}, {vNu[r]}, 0 op_sel_hi:[1,0,0]
        v_fma_mix_f32 {Xim(c)[r]}, {vH[4 * c + r]}, {vNu[r]}, 0 op_sel:[1,0,0] op_sel_hi:[1,0,0]""")
a(f"""L_noinit:
s_waitcnt lgkmcnt(0)
s_barrier""")
for c in range(2):
    a(f"""ds_read2st64_b32 {Pq(c)[0:2]}, {vXm} offset0:{32 * c} offset1:{32 * c + 4}
    ds_read2st64_b32 {Pq(c)[2:4]}, {vXm} offset0:{32 * c + 8} offset1:{32 * c + 12}""")
for c in range(2):
    a(f"s_waitcnt lgkmcnt({2 - 2 * c})")
    mfma(a, Dre(c), vG8[0:4], Pq(c))
    mfma(a, Dim(c), vG8[4:8], Pq(c))
for c in range(2):
    tw4(c, vWc[4 * c:4 * c + 4], cmul_swap)
    mfma(a, Dim(c), vG8[0:4], Pq(c))
    mfma(a, Dre(c), vG8[4:8], Pq(c))
for c in range(2):
    cvt4(Qq(c), c)
    a(f"""ds_write2st64_b32 {vXm}, {Qq(c)[0]}, {Qq(c)[1]} offset0:{32 * c} offset1:{32 * c + 4}
    ds_write2st64_b32 {vXm}, {Qq(c)[2]}, {Qq(c)[3]} offset0:{32 * c + 8} offset1:{32 * c + 12}""")
a("s_waitcnt lgkmcnt(0)\ns_barrier")
for c in range(2):
    a(f"ds_read_b128 {Pq(c)}, {vXw} offset:{8192 * c}")
for c in range(2):
    a(f"s_waitcnt lgkmcnt({1 - c})")
    mfma(a, Dre(c), Pq(c), vMi[0:4])
    mfma(a, Dim(c), Pq(c), vMi[4:8])
for c in range(2):
    tw4(c, vTi, cmul_swap)
    mfma(a, Xre(c), vF[4:8], Pq(c), Xre(c))
    mfma(a, Xim(c), vF[0:4] if c == 0 else vF1, Pq(c), Xim(c))
a(f"""s_cmp_eq_u32 {sLayer}, 3
s_cbranch_scc1 L_columns_done
v_mul_f32 {vTmp[4]}, {sSc}, {sSc}""")
for r in range(4):
    a(f"v_mul_f32 {vNu[r]}, {Xre(0)[r]}, {Xre(0)[r]}")
for src in (Xim(0), Xre(1), Xim(1)):
    for r in range(4):
        a(f"v_fmac_f32 {vNu[r]}, {src[r]}, {src[r]}")
for r in range(4):
    a(f"v_mul_f32 {vTmp[r]}, {vNu[r]}, {vTmp[4]}")
a(f"""v_cvt_pk_bf16_f32 {vTmp[6]}, {vTmp[0]}, {vTmp[1]}
v_cvt_pk_bf16_f32 {vTmp[7]}, {vTmp[2]}, {vTmp[3]}
s_waitcnt vmcnt(0)
buffer_store_dwordx2 {vTmp[6:8]}, {vPo}, {sWS}, {sPartOff} offen sc1
s_add_u32 {sPartOff}, {sPartOff}, {PART_L}""")
stamp()
a(f"""s_cmp_lg_u32 {sLayer}, 0
s_cbranch_scc1 L_nowb0""")
w_load(WS_WB)
a("L_nowb0:")
for r in range(4):
    a(f"v_max_f32 {vNu[r]}, {fl(1e-30)}, {vNu[r]}")
for r in range(4):
    a(f"v_rsq_f32 {vTmp[r]}, {vNu[r]}")
for c in range(2):
    for r in range(4):
        a(f"v_mul_f32 {Dre(c)[r]}, {Xre(c)[r]}, {vTmp[r]}\nv_mul_f32 {Dim(c)[r]}, {Xim(c)[r]}, {vTmp[r]}")
for c in range(2):
    for r in range(4):
        a(f"v_cvt_pk_f16_f32 {vXh[4 * c + r]}, {Dre(c)[r]}, {Dim(c)[r]}")
for r in range(4):
    a(f"v_mul_f32 {vNu[r]}, {vNu[r]}, {vTmp[r]}")
for r in range(4):
    a(f"v_mul_f32 {vNu[r]}, {sSc}, {vNu[r]}")
a(f"""s_cmp_eq_u32 {sLayer}, 1
s_cbranch_scc1 L_wait1
s_cmp_eq_u32 {sLayer}, 2
s_cbranch_scc1 L_wait2
s_waitcnt vmcnt(0)""")
w_check(WS_WB, sWRB, sWIB, 3)
w_max(1)
for i in range(8):
    a(f"v_bfi_b32 {vWn[i]}, {sSign}, {vWn[i]}, {vQ[i]}")
a(f"""s_add_u32 {sA}, {sCoff}, {WS_T2}
s_add_u32 {sB}, {sA}, 8192
buffer_store_dwordx4 {vNeg}, {vT16}, {sWS}, {sA} offen sc1
buffer_store_dwordx4 {vNeg}, {vT16}, {sWS}, {sB} offen sc1
s_branch L_waitc
L_wait1:""")
r1_consts()
a("s_branch L_waitc\nL_wait2:")
for r in range(4):
    a(f"v_mul_f32 {vTmp[r]}, {sIsc}, {vSg[r]}")
for c in range(2):
    for r in range(4):
        a(f"""v_fma_mix_f32 {Xre(c)[r]}, -{vH[4 * c + r]}, {vTmp[r]}, {Xre(c)[r]} op_sel_hi:[1,0,0]
        v_fma_mix_f32 {Xim(c)[r]}, -{vH[4 * c + r]}, {vTmp[r]}, {Xim(c)[r]} op_sel:[1,0,0] op_sel_hi:[1,0,0]""")
a(f"""L_waitc:
v_mov_b32 {vTmp[0]}, {sSc}
v_mul_f32 {vTmp[0]}, {sIscN}, {vTmp[0]}""")
for i in range(16):
    a(f"v_mul_f32 {vXs[i]}, {vXs[i]}, {vTmp[0]}")
for i in range(8):
    a(f"v_swap_b32 {vWc[i]}, {vWn[i]}")
a(f"""s_mov_b32 {sA}, {sSc}
s_mov_b32 {sSc}, {sScN}
s_mov_b32 {sScN}, {sA}
s_mov_b32 {sA}, {sIsc}
s_mov_b32 {sIsc}, {sIscN}
s_mov_b32 {sIscN}, {sA}
s_add_u32 {sLayer}, {sLayer}, 1""")
stamp()
again, ok = lab("rsagain"), lab("rsok")
a(f"""{again}:
buffer_load_dwordx4 {vTmp[0:4]}, {vT16}, {sWS}, {sRsOff} offen sc1
s_waitcnt vmcnt(0)
v_or3_b32 {vTmp[4]}, {vTmp[0]}, {vTmp[1]}, {vTmp[2]}
v_or_b32 {vTmp[4]}, {vTmp[4]}, {vTmp[3]}
v_cmp_gt_i32 vcc, 0, {vTmp[4]}
s_cbranch_vccz {ok}""")
spin_tail(again, ok, 4, vTmp[4])
a(f"{ok}:")
stamp()
for r in range(4):
    a(f"v_mul_f32 {vTmp[r]}, {vTmp[r]}, {vNu[r]}")
a(f"""s_add_u32 {sRsOff}, {sRsOff}, 0x10000
v_cvt_pk_f16_f32 {vFp[0]}, {vTmp[0]}, {vTmp[1]}
v_cvt_pk_f16_f32 {vFp[1]}, {vTmp[2]}, {vTmp[3]}
s_branch L_layer
L_columns_done:
v_mov_b32 {vTmp[0]}, {sSc}
v_mul_f32 {vTmp[1]}, {sS1}, {vTmp[0]}
v_lshrrev_b32 {vTmp[2]}, 3, v0
v_and_b32 {vTmp[3]}, 7, v0
v_lshlrev_b32 {vTmp[3]}, 4, {vTmp[3]}
v_lshl_add_u32 {vTmp[2]}, {vTmp[2]}, 8, {vTmp[3]}
s_add_u32 {sA}, {sCoff}, {WS_T2}""")
for c in range(2):
    for i in range(8):
        a(f"v_mul_f32 {vXs[8 * c + i]}, {vXs[8 * c + i]}, {vTmp[c]}")
for c in range(2):
    for r in range(4):
        a(f"v_cvt_pk_bf16_f32 {Pq(c)[r]}, {Xre(c)[r]}, {Xim(c)[r]}")
for r in range(4):
    a(f"v_mov_b32 {vQ[r]}, {vP[r]}")
for r in range(4):
    a(f"v_mov_b32_dpp {vP[r]}, {vP[4 + r]} row_shr:4 row_mask:0xf bank_mask:0xa")
a(f"buffer_store_dwordx4 {vP[0:4]}, {vTmp[2]}, {sWS}, {sA} offen sc1")
for r in range(4):
    a(f"v_mov_b32_dpp {vP[4 + r]}, {vQ[r]} row_shl:4 row_mask:0xf bank_mask:0x5")
a(f"""buffer_store_dwordx4 {vP[4:8]}, {vTmp[2]}, {sWS}, {sA} offen offset:128 sc1
s_sub_u32 {sA}, s2, 1
s_lshl_b32 {sB}, {sW}, 8
s_or_b32 {sB}, {sB}, {sA}
s_cmp_ge_u32 {sB}, 96
s_cbranch_scc1 L_notrig
s_lshl_b32 {sA}, {sA}, 7
s_add_u32 {sA}, {sA}, {WS_TRIG}
s_mov_b64 exec, 1
buffer_store_dword {vL}, off, {sWS}, {sA} sc1
s_mov_b64 exec, -1
L_notrig:""")
stamp()
a("s_waitcnt vmcnt(0)")
col_high = R.high

R.free, R.named = set(saved_free), dict(saved_named)
vAd = R.alloc("Ad", 8)
vY2 = R.alloc("rowY", 16)
vPB = R.alloc("PB", 8)
a("L_final:")
stamp()
for i in range(8):
    a(f"v_mov_b32 {vAd[i]}, 0")
for i in range(4):
    a(f"v_mov_b32 {vCo[4 + i]}, 0")
a(f"v_mov_b32 {vPB[3]}, 0\nv_mov_b32 {vPB[7]}, 0")
again, ok = lab("t2again"), lab("t2ok")
a(f"""{again}:
buffer_load_dwordx4 {vCo[0:4]}, {vG2[0]}, {sWS}, 0 offen sc1
s_mov_b64 exec, 0xffff
buffer_load_dwordx4 {vCo[4:8]}, {vG2[1]}, {sWS}, 0 offen sc1
s_mov_b64 exec, -1
s_waitcnt vmcnt(0)
v_max3_u32 {vTmp[0]}, {vCo[0]}, {vCo[1]}, {vCo[2]}
v_max3_u32 {vTmp[1]}, {vCo[3]}, {vCo[4]}, {vCo[5]}
v_max3_u32 {vTmp[0]}, {vCo[6]}, {vCo[7]}, {vTmp[0]}
v_max_u32 {vTmp[0]}, {vTmp[0]}, {vTmp[1]}
v_cmp_eq_u32 vcc, -1, {vTmp[0]}
s_cbranch_vccz {ok}""")
spin_tail(again, ok, 5, vTmp[0])
a(f"{ok}:")
stamp()
a(f"""ds_write2st64_b32 {vRd[0]}, {vCo[0]}, {vCo[1]} offset0:0 offset1:6
ds_write2st64_b32 {vRd[0]}, {vCo[2]}, {vCo[3]} offset0:12 offset1:18
s_mov_b64 exec, 0xffff
ds_write2st64_b32 {vRd[1]}, {vCo[4]}, {vCo[5]} offset0:0 offset1:6
ds_write2st64_b32 {vRd[1]}, {vCo[6]}, {vCo[7]} offset0:12 offset1:18
s_mov_b32 exec_lo, 0x37763776
s_mov_b32 exec_hi, 0x37763776
s_waitcnt lgkmcnt(0)
s_barrier
ds_read2_b32 {vAd[0:2]}, {vGa[0]} offset0:0 offset1:20
ds_read2_b32 {vAd[2:4]}, {vGa[0]} offset0:40 offset1:60
s_mov_b32 exec_lo, 0x17771777
s_mov_b32 exec_hi, 0x17771777
ds_read2_b32 {vAd[4:6]}, {vGa[1]} offset0:60 offset1:40
ds_read2_b32 {vAd[6:8]}, {vGa[1]} offset0:20 offset1:0
s_mov_b64 exec, -1
s_waitcnt lgkmcnt(2)""")
for t in range(2):
    for o in range(2):
        mfma(a, vY2[8 * t + 4 * o:8 * t + 4 * o + 4], vAd[0:4], vRA[16 * t + 4 * o:16 * t + 4 * o + 4], "0", "bf16")
a("s_waitcnt lgkmcnt(0)")
for t in range(2):
    for o in range(2):
        y = vY2[8 * t + 4 * o:8 * t + 4 * o + 4]
        mfma(a, y, vAd[4:8], vRA[16 * t + 8 + 4 * o:16 * t + 12 + 4 * o], y, "bf16")
for t in range(2):
    for r in range(3):
        a(f"""v_mul_f32 {vTmp[r]}, {vY2[8 * t + r]}, {vT1c[3 * t + r]}
        v_mul_f32 {vTmp[4 + r]}, {vY2[8 * t + r]}, {vT1s[3 * t + r]}""")
    for r in range(3):
        a(f"""v_fma_f32 {vTmp[r]}, -{vY2[8 * t + 4 + r]}, {vT1s[3 * t + r]}, {vTmp[r]}
        v_fmac_f32 {vTmp[4 + r]}, {vY2[8 * t + 4 + r]}, {vT1c[3 * t + r]}""")
    for r in range(3):
        a(f"v_cvt_pk_bf16_f32 {vPB[4 * t + r]}, {vTmp[r]}, {vTmp[4 + r]}")
    for tl in range(2):
        o = vOut[8 * t + 4 * tl:8 * t + 4 * tl + 4]
        mfma(a, o, vRB[4 * tl:4 * tl + 4], vPB[4 * t:4 * t + 4], o, "bf16")
for e in range(5):
    a(f"""v_cvt_pk_bf16_f32 {vTmp[e]}, {vOut[e]}, {vOut[8 + e]}
    buffer_store_dword {vTmp[e]}, {vL4}, {sOUT}, {sXoff} offen offset:{256 * e}""")
a(f"""s_or_b32 {sA}, s2, {sW}
s_cmp_lg_u32 {sA}, 0
s_cbranch_scc1 L_noepoch
s_add_u32 {sA}, {sE}, 1
v_mov_b32 {vTmp[6]}, {sA}
s_mov_b64 exec, 1
buffer_store_dword {vTmp[6]}, off, {sWS}, 0 offset:{WS_EPOCH} sc1
s_mov_b64 exec, -1
L_noepoch:""")
if STAMPS:
    a("s_waitcnt vmcnt(0)")
    stamp()
    a(f"""s_lshl_b32 {sA}, s2, 11
    s_add_u32 {sA}, {sA}, {WS_DBG}
    v_lshlrev_b32 {vTmp[0]}, 2, v0
    buffer_store_dword {vSt}, {vTmp[0]}, {sWS}, {sA} offen""")
a("L_end:\ns_endpgm")
R.release("Ad", "rowY", "PB")

a(f"""L_noncolumn:
s_cmp_ge_u32 s2, 192
s_cbranch_scc1 L_helper""")
vIn = R.alloc("red_in", 20)
vSel = R.alloc("red_sel", 4)
vAcc = R.alloc("red_acc", 8)
vRa = R.alloc("red_ad", 4, 1)
for l in (1, 2):
    for off in (0, 8192, 12288):
        a(f"""s_add_u32 {sA}, {sPartOff}, {PART_L * l + off}
        buffer_store_dwordx4 {vNeg}, {vT16}, {sWS}, {sA} offen sc1""")
a(f"""v_and_b32 {vTmp[0]}, 1, {vL}
v_lshlrev_b32 {vTmp[0]}, 4, {vTmp[0]}
v_mov_b32 {vTmp[1]}, 0x3f80
v_lshlrev_b32 {vTmp[0]}, {vTmp[0]}, {vTmp[1]}
v_bfe_u32 {vTmp[1]}, {vL}, 1, 3""")
for i in range(4):
    a(f"v_cmp_eq_u32 {sPair}, {i}, {vTmp[1]}\nv_cndmask_b32 {vSel[i]}, 0, {vTmp[0]}, {sPair}")
a(f"""v_lshlrev_b32 {vRa[0]}, 4, {vL}
s_lshl_b32 {sA}, {sW}, 9
s_add_u32 {sA}, {sA}, {L_RED}
v_add_u32 {vRa[1]}, {sA}, {vRa[0]}
s_mul_i32 {sA}, {sW}, 5120
v_add_u32 {vRa[0]}, {sA}, {vRa[0]}
v_bfe_u32 {vTmp[0]}, {vL}, 2, 1
v_lshrrev_b32 {vTmp[1]}, 3, {vL}
v_lshl_add_u32 {vTmp[0]}, {vTmp[0]}, 4, {vTmp[1]}
v_and_b32 {vTmp[1]}, 3, {vL}
v_lshl_add_u32 {vTmp[0]}, {vTmp[0]}, 2, {vTmp[1]}
v_lshlrev_b32 {vTmp[0]}, 2, {vTmp[0]}
v_add_u32 {vRa[2]}, {L_RED}, {vTmp[0]}
v_add_u32 {vRa[3]}, 128, {vRa[2]}
s_lshl_b32 {sA}, {sW}, 13
s_add_u32 {sRsOff}, {sRsOff}, {sA}""")
r1_consts()
a(f"""s_mov_b32 {sLayer}, 0
s_waitcnt vmcnt(0)
L_red:
s_cmp_ge_u32 {sW}, 4
s_cbranch_scc1 L_red_join
s_add_u32 {sB}, {sPartOff}, 4096""")
again, ok = lab("redagain"), lab("redok")
a(f"{again}:")
for i in range(4):
    a(f"buffer_load_dwordx4 {vIn[4 * i:4 * i + 4]}, {vRa[0]}, {sWS}, {sPartOff} offen offset:{1024 * i} sc1")
a(f"buffer_load_dwordx4 {vIn[16:20]}, {vRa[0]}, {sWS}, {sB} offen sc1")
for i in range(5):
    a(f"s_waitcnt vmcnt({4 - i})")
    mfma(a, vAcc[0:4], vSel, vIn[4 * i:4 * i + 4], "0" if i == 0 else vAcc[0:4], "bf16")
a(f"""v_cmp_u_f32 vcc, {vAcc[0]}, {vAcc[0]}
s_cbranch_vccz {ok}""")
spin_tail(again, ok, 6, vTmp[0])
a(f"""{ok}:
s_mov_b32 exec_hi, 0
ds_write_b128 {vRa[1]}, {vAcc[0:4]}
s_mov_b32 exec_hi, -1
s_waitcnt lgkmcnt(0)
L_red_join:
s_barrier
ds_read2st64_b32 {vAcc[0:2]}, {vRa[2]} offset0:0 offset1:2
ds_read2st64_b32 {vAcc[2:4]}, {vRa[3]} offset0:0 offset1:2
ds_read2st64_b32 {vAcc[4:6]}, {vRa[2]} offset0:4 offset1:6
ds_read2st64_b32 {vAcc[6:8]}, {vRa[3]} offset0:4 offset1:6
v_mov_b32 {vTmp[1]}, {fl(1e-5)}
s_waitcnt lgkmcnt(2)
v_add_f32 {vAcc[0]}, {vAcc[0]}, {vAcc[1]}
v_add_f32 {vAcc[2]}, {vAcc[2]}, {vAcc[3]}
s_waitcnt lgkmcnt(0)
v_add_f32 {vAcc[4]}, {vAcc[4]}, {vAcc[5]}
v_add_f32 {vAcc[6]}, {vAcc[6]}, {vAcc[7]}
v_add_f32 {vAcc[0]}, {vAcc[0]}, {vAcc[2]}
v_add_f32 {vAcc[4]}, {vAcc[4]}, {vAcc[6]}
v_add_f32 {vAcc[0]}, {vAcc[0]}, {vAcc[4]}
v_fmac_f32 {vTmp[1]}, {fl(1 / 200)}, {vAcc[0]}
v_rsq_f32 {vTmp[1]}, {vTmp[1]}
s_nop 0
buffer_store_dword {vTmp[1]}, {vL4}, {sWS}, {sRsOff} offen sc1""")
stamp()
a(f"""s_add_u32 {sRsOff}, {sRsOff}, 0x10000
s_add_u32 {sPartOff}, {sPartOff}, {PART_L}
s_add_u32 {sLayer}, {sLayer}, 1
s_cmp_lt_u32 {sLayer}, 3
s_cbranch_scc1 L_red
s_branch L_trigger
L_helper:""")
R.release("red_in", "red_sel", "red_acc", "red_ad")
vWb = [R.alloc("wb%d" % i, 3) for i in range(8)]
a(f"s_sub_u32 {sD}, s2, 192\ns_lshl_b32 {sD}, {sD}, 2\ns_mov_b32 {sLayer}, {sD}")
for rd in range(4):
    scalar_q(a, sD, sWo[rd], sPa[rd])
    a(f"""s_add_u32 {sD}, {sD}, 1
    s_mov_b32 exec_hi, 0x3fffff
    buffer_load_dwordx3 {vWb[2 * rd]}, {vL12}, {sWRB}, {sWo[rd]} offen
    buffer_load_dwordx3 {vWb[2 * rd + 1]}, {vL12}, {sWIB}, {sWo[rd]} offen
    s_mov_b32 exec_hi, -1""")
a(f"""s_sub_u32 {sWreg}, {sLayer}, {sP}
s_lshl_b32 {sWreg}, {sWreg}, 6
s_add_u32 {sWreg}, {sWreg}, {WS_WB - WS_H}
v_cmp_gt_u32 {sPair}, 16, {vL}
s_waitcnt vmcnt(0)""")
for rd in range(4):
    region = L_SW if rd % 2 == 0 else L_XC
    w_stage(a, vWb[2 * rd], vWb[2 * rd + 1], region)
    w_addr(a, sPa[rd], (region - L_SH) & 0xffffffff)
    a("s_waitcnt lgkmcnt(0)\ns_barrier")
    stage_read(a, vRdW)
    a("s_waitcnt lgkmcnt(0)")
    w_copy_out(a, sWreg)
    a(f"s_add_u32 {sWreg}, {sWreg}, 64")
stamp()
r1_consts()
again, ok = lab("trigagain"), lab("trigok")
a(f"""L_trigger:
s_cmp_lg_u32 {sW}, 0
s_cbranch_scc1 {ok}
s_lshl_b32 {sA}, s2, 7
s_add_u32 {sA}, {sA}, {WS_TRIG - 160 * 128}
s_mov_b64 exec, 1
{again}:
buffer_load_dword {vTmp[0]}, off, {sWS}, {sA} sc1
s_waitcnt vmcnt(0)
v_cmp_gt_i32 vcc, 0, {vTmp[0]}
s_cbranch_vccz {ok}""")
spin_tail(again, ok, 7, vTmp[0])
a(f"""{ok}:
s_mov_b64 exec, -1
s_barrier
s_branch L_final""")
a.extend(tail)

lines, added = fix_hazards(a.lines)
lines, size = align8(lines)
lines2, added2 = fix_hazards(lines)
assert added2 == 0
hdr = open("cdna_kernels/%s.s.ref" % NAME).read().split("; Override launch")[0]
src = hdr + f"""; @launch grid=(256,1,1) block=(512,1,1) lds={LDS_BYTES}
.amdgcn_target "amdgcn-amd-amdhsa--gfx950"
.text
.globl {NAME}_kernel
.p2align 8
.type {NAME}_kernel,@function
{NAME}_kernel:
""" + "\n".join(l if l.endswith(":") else "    " + l for l in lines) + f"""
.section .rodata,"a"
.p2align 6
.amdhsa_kernel {NAME}_kernel
  .amdhsa_next_free_vgpr 256
  .amdhsa_next_free_sgpr 102
  .amdhsa_accum_offset 256
  .amdhsa_group_segment_fixed_size 0
  .amdhsa_kernarg_size 72
  .amdhsa_user_sgpr_count 2
  .amdhsa_user_sgpr_kernarg_segment_ptr 1
  .amdhsa_system_sgpr_workgroup_id_x 1
.end_amdhsa_kernel
"""
open(OUT, "w").write(src)
print("instructions:", sum(1 for l in lines if not l.endswith(":")), "bytes:", size, "nop states added:", added,
      "vgpr high:", R.high)
```
